```python
import torch

def _softmax(x, axis=-1):
    return torch.softmax(x, dim=axis)
def _gelu(x):
    return torch.nn.functional.gelu(x, approximate="tanh")
def _silu(x):
    return torch.nn.functional.silu(x)
def _sigmoid(x):
    return torch.sigmoid(x)
def _layernorm(x, axis=-1, eps=1e-5):
    m = x.mean(dim=axis, keepdim=True)
    v = x.var(dim=axis, keepdim=True, unbiased=False)
    return (x - m) / torch.sqrt(v + eps)
def _scatter_add(tgt, idx, src, axis=0):
    return tgt.clone().index_add_(axis, idx, src)
def _segment_sum(src, seg, n):
    out = torch.zeros((n,) + src.shape[1:], dtype=src.dtype)
    return out.index_add_(0, seg, src)
def _pad(x, pw):
    flat = tuple(v for pair in reversed(pw) for v in pair)
    return torch.nn.functional.pad(x, flat)

kernel_name = 'gated_mix__linear_kernel_hedgehog__softmax_full_mha__prompt'

def setup_inputs():

    _w = (lambda a: (lambda t: t.to(torch.bfloat16) if t.is_floating_point() else t)(torch.as_tensor(a)))
    def _A_setup():
        B, S, D, H = 1, 2048, 448, 16
        Dh = D // H
        return {
            "x": _w((lambda *s: torch.randn(*s, dtype=torch.bfloat16) * 0.05)(B, S, D)),
            "wqkv": _w((lambda *s: torch.randn(*s, dtype=torch.bfloat16) * 3.2)(D, 3 * D)),
            "w_phi": _w((lambda *s: torch.randn(*s, dtype=torch.bfloat16) * 3.2)(H, Dh, Dh) * (Dh ** -0.5)),
            "wo": _w((lambda *s: torch.randn(*s, dtype=torch.bfloat16) * 0.05)(D, D)),
        }
    _A_in = _A_setup()

    def _B_setup():
        B, S, D = 1, 2048, 448
        return {
            "x": _w((lambda *s: torch.randn(*s, dtype=torch.bfloat16) * 0.05)(B, S, D)),
            "wqkv": _w((lambda *s: torch.randn(*s, dtype=torch.bfloat16) * 1.6)(D, 3 * D)),
            "wo": _w((lambda *s: torch.randn(*s, dtype=torch.bfloat16) * 0.05)(D, D)),
        }
    _B_in = _B_setup()

    return {
        "A_x": _A_in["x"],
        "A_wqkv": _A_in["wqkv"],
        "A_w_phi": _A_in["w_phi"],
        "A_wo": _A_in["wo"],
        "B_x": _B_in["x"],
        "B_wqkv": _B_in["wqkv"],
        "B_wo": _B_in["wo"],
        "gate_w": _w((lambda *s: torch.randn(*s, dtype=torch.bfloat16) * 0.05)(448) * 16.0),
    }

def reference(A_x, A_wqkv, A_w_phi, A_wo, B_x, B_wqkv, B_wo, gate_w):
    def _A_ref(x, wqkv, w_phi, wo):
        B, S, D = x.shape
        H = 16; Dh = D // H
        qkv = (lambda x, *d: x.permute(*d))((x @ wqkv).reshape(B, S, 3, H, Dh), 2, 0, 3, 1, 4)
        q, k, v = qkv[0], qkv[1], qkv[2]
        pq = torch.einsum("bhsd,hdf->bhsf", q, w_phi)
        pk = torch.einsum("bhsd,hdf->bhsf", k, w_phi)
        phi_q = torch.concatenate([_softmax(pq, axis=-1), _softmax(-pq, axis=-1)], axis=-1)
        phi_k = torch.concatenate([_softmax(pk, axis=-1), _softmax(-pk, axis=-1)], axis=-1)
        kv = torch.einsum("bhsf,bhsd->bhfd", phi_k, v)
        z  = torch.einsum("bhsf->bhf", phi_k)
        num = torch.einsum("bhqf,bhfd->bhqd", phi_q, kv)
        den = torch.einsum("bhqf,bhf->bhq", phi_q, z)[..., None] + 1e-6
        o = num / den
        return (lambda x, *d: x.permute(*d))(o, 0, 2, 1, 3).reshape(B, S, D) @ wo

    def _B_ref(x, wqkv, wo):
        B, S, D = x.shape
        H = 16; Dh = D // H
        qkv = (lambda x, *d: x.permute(*d))((x @ wqkv).reshape(B, S, 3, H, Dh), 2, 0, 3, 1, 4)
        q, k, v = qkv[0], qkv[1], qkv[2]
        scale = Dh ** -0.5
        scores = torch.einsum("bhqd,bhkd->bhqk", q, k) * scale
        p = _softmax(scores, axis=-1)
        o = torch.einsum("bhqk,bhkd->bhqd", p, v)
        return (lambda x, *d: x.permute(*d))(o, 0, 2, 1, 3).reshape(B, S, D) @ wo

    x = A_x
    g = _sigmoid((x * gate_w).sum(-1, keepdims=True))
    a = _A_ref(x, A_wqkv, A_w_phi, A_wo)
    b = _B_ref(x, B_wqkv, B_wo)
    return g * a + (1 - g) * b
```

```python
class Asm:
    def __init__(self):
        self.lines = []
    def __call__(self, s=""):
        for ln in s.split("\n"):
            ln = ln.strip()
            if not ln: continue
            if ln.endswith(":") or ln.startswith("."):
                self.lines.append(ln)
            else:
                self.lines.append("    " + ln)
    def text(self):
        return "\n".join(self.lines) + "\n"

def vr(b, n=1, p="v"):
    return f"{p}{b}" if n == 1 else f"{p}[{b}:{b+n-1}]"
def ar(b, n=1): return vr(b, n, "a")
def sr(b, n=1): return vr(b, n, "s")

def srd(A, d, base, nbytes):
    A(f"s_mov_b32 s{d}, s{base}")
    A(f"s_mov_b32 s{d+1}, s{base+1}")
    A(f"s_mov_b32 s{d+2}, {nbytes:#x}")
    A(f"s_mov_b32 s{d+3}, 0x00020000")

def kernel_head(A, name):
    A(f".globl {name}\n.p2align 8\n.type {name},@function\n{name}:")

def kernel_desc(name, nvgpr, accum, nsgpr=102):
    return f""".p2align 6
.amdhsa_kernel {name}
  .amdhsa_next_free_vgpr {nvgpr}
  .amdhsa_next_free_sgpr {nsgpr}
  .amdhsa_accum_offset {accum}
  .amdhsa_group_segment_fixed_size 0
  .amdhsa_kernarg_size 88
  .amdhsa_user_sgpr_count 2
  .amdhsa_user_sgpr_kernarg_segment_ptr 1
  .amdhsa_system_sgpr_workgroup_id_x 1
.end_amdhsa_kernel
"""
```

```python
from asmlib import *
from layout import *

SLOT = 37888; XSZ = 16384; GATE_LDS = 4*SLOT; K1_LDS = GATE_LDS + 1024

def check_w_offsets():
    for w in range(4):
        for j in range(6):
            n = 20 if j == 5 else 5*w + j
            imm = 0 if j >= 4 else j*1024
            for l in range(64):
                p = 64*n + l
                rho = (p*3121) >> 16
                assert rho == p//21
                k = (rho & ~15) + 4*(rho & 3) + ((rho >> 2) & 3)
                assert k*2688 - imm >= 0
check_w_offsets()

def emit_k1(A, name="proj_kernel"):
    sX, sW, sG, sWS, sP = 24, 28, 32, 36, 40
    sCG, sRB, sWV, sC = 44, 45, 46, 47
    sXO, sWO, sM0X, sM0W, sM0W2, sM0Q = 48, 49, 50, 51, 52, 53
    sQM = 54
    sSLOT, sT0, sT1, sT2, sSC, sP0, sP1, sDST = 56, 57, 58, 59, 60, 61, 62, 63
    sHI = 64
    sVAR, sSLOTC = 66, 67
    vL, vHI, vT0, vT1, vT2, vT3 = 1, 2, 3, 4, 5, 6
    vXO = 8
    vWO = 12
    vXA = 18
    vWA = 22
    vGA = 23
    vGS = 24
    vST = 25
    vSN = 26
    vKEEP, vONES = 27, 28
    vXF = 32
    vGF = 40
    vWF = 48
    vACC = 96
    vP = 192
    vWP = 200
    kernel_head(A, name)
    A(f"""
    s_cmp_ge_u32 s2, 256
    s_cbranch_scc1 L1_end
    s_load_dwordx8 s[4:11], s[0:1], 0
    s_load_dwordx8 s[12:19], s[0:1], 32
    s_load_dwordx2 s[20:21], s[0:1], 80
    v_and_b32 v{vL}, 63, v0
    v_lshrrev_b32 v{vT0}, 6, v0
    v_lshrrev_b32 v{vHI}, 5, v{vL}
    v_readfirstlane_b32 s{sWV}, v{vT0}
    s_and_b32 s{sT0}, s2, 7
    s_lshr_b32 s{sT1}, s2, 3
    s_and_b32 s{sRB}, s{sT0}, 1
    s_lshl_b32 s{sRB}, s{sRB}, 3
    s_and_b32 s{sT2}, s{sT1}, 7
    s_add_u32 s{sRB}, s{sRB}, s{sT2}
    s_lshr_b32 s{sCG}, s{sT0}, 1
    s_lshl_b32 s{sCG}, s{sCG}, 2
    s_lshr_b32 s{sT2}, s{sT1}, 3
    s_add_u32 s{sCG}, s{sCG}, s{sT2}
    """)
    A(f"""
    s_lshl_b32 s{sT0}, s{sRB}, 2
    s_add_u32 s{sT0}, s{sT0}, s{sWV}
    s_mul_i32 s{sXO}, s{sT0}, {32*896}
    v_lshrrev_b32 v{vT0}, 3, v{vL}
    v_mul_u32_u24 v{vT0}, 896, v{vT0}
    v_lshrrev_b32 v{vT1}, 4, v{vL}
    v_and_b32 v{vT2}, 7, v{vL}
    v_xor_b32 v{vT1}, v{vT1}, v{vT2}
    v_lshl_add_u32 v{vXO}, v{vT1}, 4, v{vT0}
    v_xor_b32 v{vT1}, 4, v{vT1}
    v_lshl_add_u32 v{vXO+1}, v{vT1}, 4, v{vT0}
    v_add_u32 v{vXO+1}, {8*896-1024}, v{vXO+1}
    v_add_u32 v{vXO+2}, {16*896-2048}, v{vXO}
    v_add_u32 v{vXO+3}, {16*896-2048}, v{vXO+1}
    """)
    A(f"s_mul_i32 s{sT0}, s{sWV}, 320")
    A(f"s_movk_i32 s{sT1}, 3121")
    for j in range(6):
        imm = 0 if j >= 4 else j*1024
        if j < 5:
            A(f"v_add_u32 v{vT0}, s{sT0}, v{vL}")
            if j: A(f"v_add_u32 v{vT0}, {64*j}, v{vT0}")
        else:
            A(f"v_add_u32 v{vT0}, 1280, v{vL}")
        A(f"""
        v_mul_u32_u24 v{vT1}, s{sT1}, v{vT0}
        v_lshrrev_b32 v{vT1}, 16, v{vT1}
        v_mul_u32_u24 v{vT2}, 21, v{vT1}
        v_sub_u32 v{vT0}, v{vT0}, v{vT2}
        v_and_b32 v{vT2}, 3, v{vT1}
        v_bfe_u32 v{vT3}, v{vT1}, 2, 2
        v_and_b32 v{vT1}, 48, v{vT1}
        v_lshl_add_u32 v{vT2}, v{vT2}, 2, v{vT3}
        v_add_u32 v{vT1}, v{vT1}, v{vT2}
        v_mul_u32_u24 v{vT1}, 2688, v{vT1}
        v_lshl_add_u32 v{vWO+j}, v{vT0}, 4, v{vT1}
        """)
        if imm: A(f"v_subrev_u32 v{vWO+j}, {imm}, v{vWO+j}")
    A(f"""
    s_and_b32 s{sT0}, s{sCG}, 7
    s_mul_i32 s{sWO}, s{sT0}, 336
    s_lshl_b32 s{sM0X}, s{sWV}, 12
    s_mul_i32 s{sM0W}, s{sWV}, 5120
    s_add_u32 s{sM0W}, s{sM0W}, {XSZ}
    s_add_u32 s{sM0W2}, s{sM0W}, 4096
    s_mov_b32 s{sM0Q}, {XSZ + 20*1024}
    s_lshl_b32 s{sT0}, s{sWV}, 4
    s_mov_b64 s[{sQM}:{sQM+1}], 0xffff
    s_lshl_b64 s[{sQM}:{sQM+1}], s[{sQM}:{sQM+1}], s{sT0}
    s_mov_b32 s{sHI}, 0
    s_mov_b32 s{sHI+1}, -1
    v_lshlrev_b32 v{vT3}, 4, v{vL}
    s_waitcnt lgkmcnt(0)
    """)
    srd(A, sX, 4, S*D*2)
    A(f"""
    s_cmp_lt_u32 s{sCG}, 8
    s_cselect_b32 s{sW}, s6, s14
    s_cselect_b32 s{sW+1}, s7, s15
    s_mov_b32 s{sW+2}, {D*3*D*2:#x}
    s_mov_b32 s{sW+3}, 0x00020000
    """)
    srd(A, sG, 18, D*2)
    srd(A, sWS, 20, WS_END)
    srd(A, sP, 8, H*DH*DH*2)
    A(f"""
    s_mov_b32 m0, {GATE_LDS}
    s_nop 0
    buffer_load_dwordx4 v{vT3}, s[{sG}:{sG+3}], 0 offen lds
    """)
    A(f"""
    s_or_b32 s{sT0}, s{sRB}, s{sWV}
    s_cmp_lg_u32 s{sT0}, 0
    s_cbranch_scc1 L1_nowp
    v_and_b32 v{vT0}, 31, v{vL}
    v_mul_u32_u24 v{vT1}, {4*56}, v{vHI}
    v_lshl_add_u32 v{vT1}, v{vT0}, 1, v{vT1}
    v_mov_b32 v{vT2}, 0x40000000
    v_cmp_gt_u32 vcc, 28, v{vT0}
    s_mul_i32 s{sT0}, s{sCG}, 1568
    s_nop 0
    v_cndmask_b32 v{vT1}, v{vT2}, v{vT1}, vcc
    v_cndmask_b32 v{vT2}, v{vT1}, v{vT2}, s[{sHI}:{sHI+1}]
    """)
    for s_ in range(2):
        for jj in range(8):
            d = 16*s_ + (jj & 3) + 8*(jj >> 2)
            va = vT2 if d >= 24 else vT1
            A(f"buffer_load_ushort v{vWP+8*s_+jj}, v{va}, s[{sP}:{sP+3}], s{sT0} offen offset:{d*56}")
    A("L1_nowp:")
    def dma_chunk():
        A(f"s_mov_b32 m0, s{sM0X}")
        A(f"s_add_u32 s{sM0X}, s{sM0X}, {SLOT}")
        for i in range(4):
            A(f"buffer_load_dwordx4 v{vXO+i}, s[{sX}:{sX+3}], s{sXO} offen offset:{i*1024} lds")
        A(f"s_mov_b32 m0, s{sM0W}")
        A(f"s_add_u32 s{sM0W}, s{sM0W}, {SLOT}")
        for j in range(4):
            A(f"buffer_load_dwordx4 v{vWO+j}, s[{sW}:{sW+3}], s{sWO} offen offset:{j*1024} lds")
        A(f"s_mov_b32 m0, s{sM0W2}")
        A(f"s_add_u32 s{sM0W2}, s{sM0W2}, {SLOT}")
        A(f"buffer_load_dwordx4 v{vWO+4}, s[{sW}:{sW+3}], s{sWO} offen lds")
        A(f"s_mov_b32 m0, s{sM0Q}")
        A(f"s_mov_b64 exec, s[{sQM}:{sQM+1}]")
        A(f"buffer_load_dwordx4 v{vWO+5}, s[{sW}:{sW+3}], s{sWO} offen lds")
        A(f"s_mov_b64 exec, -1")
        A(f"s_add_u32 s{sM0Q}, s{sM0Q}, {SLOT}")
        A(f"s_add_u32 s{sXO}, s{sXO}, 128")
        A(f"s_add_u32 s{sWO}, s{sWO}, {64*2688}")
    A(f"s_mov_b32 s{sC}, 4")
    A("L1_pro:")
    dma_chunk()
    A(f"""
    s_sub_u32 s{sC}, s{sC}, 1
    s_cmp_lg_u32 s{sC}, 0
    s_cbranch_scc1 L1_pro
    s_sub_u32 s{sM0X}, s{sM0X}, {4*SLOT}
    s_sub_u32 s{sM0W}, s{sM0W}, {4*SLOT}
    s_sub_u32 s{sM0W2}, s{sM0W2}, {4*SLOT}
    s_sub_u32 s{sM0Q}, s{sM0Q}, {4*SLOT}
    """)
    A(f"""
    v_and_b32 v{vT0}, 31, v{vL}
    v_bfe_u32 v{vT1}, v{vL}, 1, 3
    v_xor_b32 v{vT1}, v{vT1}, v{vHI}
    v_lshlrev_b32 v{vT1}, 4, v{vT1}
    v_lshl_add_u32 v{vT1}, v{vT0}, 7, v{vT1}
    s_lshl_b32 s{sT0}, s{sWV}, 12
    v_add_u32 v{vXA}, s{sT0}, v{vT1}
    v_xor_b32 v{vXA+1}, 32, v{vXA}
    v_xor_b32 v{vXA+2}, 64, v{vXA}
    v_xor_b32 v{vXA+3}, 96, v{vXA}
    v_bfe_u32 v{vT1}, v{vL}, 2, 2
    v_lshlrev_b32 v{vT1}, 2, v{vT1}
    v_lshl_add_u32 v{vT1}, v{vHI}, 1, v{vT1}
    v_mul_u32_u24 v{vT1}, 336, v{vT1}
    v_bfe_u32 v{vT2}, v{vL}, 4, 1
    v_lshl_add_u32 v{vT1}, v{vT2}, 5, v{vT1}
    v_and_b32 v{vT2}, 3, v{vL}
    v_lshl_add_u32 v{vT1}, v{vT2}, 3, v{vT1}
    v_add_u32 v{vWA}, {XSZ}, v{vT1}
    v_lshlrev_b32 v{vGA}, 4, v{vHI}
    v_add_u32 v{vGA}, {GATE_LDS}, v{vGA}
    v_mov_b32 v{vGS}, 0
    """)
    A(f"""
    v_lshlrev_b32 v{vSN}, 4, v{vL}
    v_and_b32 v{vT1}, 0x33, v{vL}
    v_bfe_u32 v{vT2}, v{vL}, 2, 1
    v_lshl_or_b32 v{vT1}, v{vT2}, 3, v{vT1}
    v_bfe_u32 v{vT2}, v{vL}, 3, 1
    v_lshl_or_b32 v{vT1}, v{vT2}, 2, v{vT1}
    v_lshlrev_b32 v{vST}, 4, v{vT1}
    v_cmp_gt_u32 vcc, 28, v{vT0}
    v_mov_b32 v{vT2}, 0x3f803f80
    s_nop 0
    v_cndmask_b32 v{vKEEP}, 0, -1, vcc
    v_cmp_eq_u32 vcc, 28, v{vT0}
    s_nop 1
    v_cndmask_b32 v{vONES}, 0, v{vT2}, vcc
    """)
    for i in range(96):
        A(f"v_mov_b32 v{vACC+i}, 0")
    def reads(buf, ks):
        r = [f"ds_read_b128 {vr(vXF+4*buf,4)}, v{vXA+ks}",
             f"ds_read_b128 {vr(vGF+4*buf,4)}, v{vGA} offset:{ks*32}"]
        for t in range(6):
            for u in range(2):
                r.append(f"ds_read_b64_tr_b16 {vr(vWF+24*buf+4*t+2*u,2)}, v{vWA} offset:{ks*5376 + t*56 + u*336}")
        return r
    A(f"""
    s_mov_b32 s{sC}, 0
    s_mov_b32 s{sSLOT}, 0
    s_mov_b32 s{sSLOTC}, {SLOT}
    s_waitcnt vmcnt(30)
    s_barrier
    """)
    for r in reads(0, 0): A(r)
    A(f"""
    s_and_b32 s{sVAR}, s{sCG}, 7
    s_cmp_lt_u32 s{sVAR}, 5
    s_cbranch_scc1 L1_loopT
    s_cmp_eq_u32 s{sVAR}, 5
    s_cbranch_scc1 L1_loopM
    s_branch L1_loopN
    """)
    for var, types in (("T", "TTTTTT"), ("M", "TTNNNN"), ("N", "NNNNNN")):
        A(f".p2align 6\nL1_loop{var}:")
        for ks in range(4):
            buf = ks & 1
            A("s_waitcnt lgkmcnt(0)")
            if ks == 3:
                A(f"""
                s_cmp_lt_u32 s{sC}, 4
                s_cbranch_scc1 L1_w20{var}
                s_cmp_eq_u32 s{sC}, 4
                s_cbranch_scc1 L1_w10{var}
                s_waitcnt vmcnt(0)
                L1_w10{var}:
                s_waitcnt vmcnt(10)
                L1_w20{var}:
                s_waitcnt vmcnt(20)
                s_barrier
                s_add_u32 s{sSLOT}, s{sSLOT}, 1
                s_cmp_eq_u32 s{sSLOT}, 4
                s_cselect_b32 s{sT0}, {-3*SLOT}, s{sSLOTC}
                s_cselect_b32 s{sSLOT}, 0, s{sSLOT}
                v_add_u32 v{vXA}, s{sT0}, v{vXA}
                v_add_u32 v{vWA}, s{sT0}, v{vWA}
                v_add_u32 v{vGA}, 128, v{vGA}
                """)
            rd = reads(buf ^ 1, (ks + 1) & 3)
            split = [rd[0:3], rd[3:6], rd[6:9], rd[9:12], rd[12:14], []]
            dots = [f"v_dot2_f32_bf16 v{vGS}, v{vXF+4*buf+j}, v{vGF+4*buf+j}, v{vGS}" for j in range(4)]
            for t in range(6):
                w_, x_ = vr(vWF+24*buf+4*t, 4), vr(vXF+4*buf, 4)
                a_, b_ = (w_, x_) if types[t] == "T" else (x_, w_)
                A(f"v_mfma_f32_32x32x16_bf16 {vr(vACC+16*t,16)}, {a_}, {b_}, {vr(vACC+16*t,16)}")
                for r in split[t]: A(r)
                if t == 4: A(dots[0] + "\n" + dots[1])
                if t == 5: A(dots[2] + "\n" + dots[3])
                if ks == 3 and t == 0:
                    for j in range(1, 4): A(f"v_add_u32 v{vXA+j}, s{sT0}, v{vXA+j}")
            if ks == 3:
                A(f"""
                s_cmp_ge_u32 s{sC}, 3
                s_cbranch_scc1 L1_nodma{var}
                """)
                dma_chunk()
                A(f"""
                L1_nodma{var}:
                s_add_u32 s{sC}, s{sC}, 1
                s_cmp_lt_u32 s{sC}, 7
                s_cbranch_scc1 L1_loop{var}
                """)
        A(f"s_branch L1_epi{'N' if var == 'N' else 'T'}")
    def tile_addr(i):
        A(f"""
        s_mul_i32 s{sT0}, s{sCG}, 6
        s_add_u32 s{sT0}, s{sT0}, {i}
        s_lshr_b32 s{sT1}, s{sT0}, 4
        s_and_b32 s{sT0}, s{sT0}, 15
        s_lshl_b32 s{sT0}, s{sT0}, 4
        s_add_u32 s{sT0}, s{sT0}, s{sRB}
        s_lshl_b32 s{sT0}, s{sT0}, 2
        s_add_u32 s{sT0}, s{sT0}, s{sWV}
        s_mul_i32 s{sT0}, s{sT0}, 6
        s_add_u32 s{sT0}, s{sT0}, s{sT1}
        s_lshl_b32 s{sDST}, s{sT0}, 11
        """)
    def epiT(i):
        tile_addr(i)
        a = vACC + 16*i
        A(f"""
        s_cmp_eq_u32 s{sT1}, 3
        s_cselect_b32 s{sSC}, {fbits(QSCALE):#x}, 1.0
        s_cmp_eq_u32 s{sT1}, 4
        s_cselect_b32 s{sP0}, 0x3f803f80, 0
        s_cselect_b32 s{sP1}, 0x3f80, 0
        """)
        for j in range(16): A(f"v_mul_f32 v{a+j}, s{sSC}, v{a+j}")
        for j in range(8): A(f"v_cvt_pk_bf16_f32 v{a+j}, v{a+2*j}, v{a+2*j+1}")
        A(f"""
        s_mov_b64 exec, s[{sHI}:{sHI+1}]
        v_mov_b32 v{a+6}, s{sP0}
        v_mov_b32 v{a+7}, s{sP1}
        s_mov_b64 exec, -1
        buffer_store_dwordx4 {vr(a,4)}, v{vST}, s[{sWS}:{sWS+3}], s{sDST} offen
        buffer_store_dwordx4 {vr(a+4,4)}, v{vST}, s[{sWS}:{sWS+3}], s{sDST} offen offset:1024
        """)
    def epiN(i):
        tile_addr(i)
        a = vACC + 16*i
        for j in range(8): A(f"v_cvt_pk_bf16_f32 v{a+j}, v{a+2*j}, v{a+2*j+1}")
        for j in range(8): A(f"v_and_or_b32 v{a+j}, v{a+j}, v{vKEEP}, v{vONES}")
        A(f"""
        buffer_store_dwordx4 {vr(a,4)}, v{vSN}, s[{sWS}:{sWS+3}], s{sDST} offen
        buffer_store_dwordx4 {vr(a+4,4)}, v{vSN}, s[{sWS}:{sWS+3}], s{sDST} offen offset:1024
        """)
    A("L1_epiT:\ns_nop 7")
    epiT(0); epiT(1)
    A(f"s_cmp_eq_u32 s{sVAR}, 5\ns_cbranch_scc1 L1_epiN2")
    for i in range(2, 6): epiT(i)
    A("s_branch L1_post")
    A("L1_epiN:\ns_nop 7")
    epiN(0); epiN(1)
    A("L1_epiN2:")
    for i in range(2, 6): epiN(i)
    A("L1_post:")
    A(f"""
    s_cmp_lg_u32 s{sCG}, 0
    s_cbranch_scc1 L1_nog
    v_mov_b32 v{vT0}, v{vGS}
    s_nop 1
    v_permlane32_swap_b32 v{vT0}, v{vGS}
    v_add_f32 v{vT0}, v{vT0}, v{vGS}
    v_cvt_pk_bf16_f32 v{vT0}, v{vT0}, v{vT0}
    v_lshlrev_b32 v{vT0}, 16, v{vT0}
    v_mul_f32 v{vT0}, {fbits(-LOG2E):#x}, v{vT0}
    v_exp_f32 v{vT0}, v{vT0}
    s_nop 0
    v_add_f32 v{vT0}, 1.0, v{vT0}
    v_rcp_f32 v{vT0}, v{vT0}
    s_lshl_b32 s{sT0}, s{sRB}, 2
    s_add_u32 s{sT0}, s{sT0}, s{sWV}
    s_lshl_b32 s{sT0}, s{sT0}, 7
    s_add_u32 s{sT0}, s{sT0}, {WS_G}
    v_cvt_pk_bf16_f32 v{vT0}, v{vT0}, v{vT0}
    v_lshlrev_b32 v{vT0}, 16, v{vT0}
    v_lshlrev_b32 v{vT1}, 2, v{vL}
    s_mov_b32 exec_hi, 0
    buffer_store_dword v{vT0}, v{vT1}, s[{sWS}:{sWS+3}], s{sT0} offen
    s_mov_b64 exec, -1
    L1_nog:
    s_or_b32 s{sT0}, s{sRB}, s{sWV}
    s_cmp_lg_u32 s{sT0}, 0
    s_cbranch_scc1 L1_end
    """)
    for j in range(8):
        A(f"v_lshl_or_b32 v{vP+j}, v{vWP+2*j+1}, 16, v{vWP+2*j}")
    A(f"""
    s_lshl_b32 s{sT0}, s{sCG}, 11
    s_add_u32 s{sT0}, s{sT0}, {WS_WPF}
    buffer_store_dwordx4 {vr(vP,4)}, v{vSN}, s[{sWS}:{sWS+3}], s{sT0} offen
    buffer_store_dwordx4 {vr(vP+4,4)}, v{vSN}, s[{sWS}:{sWS+3}], s{sT0} offen offset:1024
    L1_end:
    s_endpgm
    """)
    return dict(name=name, grid=256, block=256, lds=K1_LDS, nvgpr=216, accum=216)
```

```python
from asmlib import *
from layout import *

def softmax_pm(A, p, ep, em, t, sHI, sL2E, out, round_p=True):
    if round_p:
        for j in range(8): A(f"v_cvt_pk_bf16_f32 v{ep+j}, v{p+2*j}, v{p+2*j+1}")
        for j in range(8):
            A(f"v_lshlrev_b32 v{p+2*j}, 16, v{ep+j}")
            A(f"v_and_b32 v{p+2*j+1}, 0xffff0000, v{ep+j}")
    A(f"s_mov_b64 exec, s[{sHI}:{sHI+1}]")
    for j in range(12, 16): A(f"v_mov_b32 v{p+j}, v{p}")
    A("s_mov_b64 exec, -1")
    mx, mn, a, b = t, t+1, t+2, t+3
    A(f"v_max3_f32 v{mx}, v{p}, v{p+1}, v{p+2}")
    A(f"v_min3_f32 v{mn}, v{p}, v{p+1}, v{p+2}")
    for j in range(3, 15, 2):
        A(f"v_max3_f32 v{mx}, v{mx}, v{p+j}, v{p+j+1}")
        A(f"v_min3_f32 v{mn}, v{mn}, v{p+j}, v{p+j+1}")
    A(f"v_max_f32 v{mx}, v{mx}, v{p+15}")
    A(f"v_min_f32 v{mn}, v{mn}, v{p+15}")
    A(f"""
    v_mov_b32 v{a}, v{mx}
    v_mov_b32 v{b}, v{mn}
    s_nop 0
    v_permlane32_swap_b32 v{a}, v{mx}
    v_permlane32_swap_b32 v{b}, v{mn}
    v_max_f32 v{mx}, v{mx}, v{a}
    v_min_f32 v{mn}, v{mn}, v{b}
    v_mul_f32 v{mx}, s{sL2E}, v{mx}
    v_mul_f32 v{mn}, s{sL2E}, v{mn}
    """)
    for j in range(16):
        A(f"v_fma_f32 v{ep+j}, v{p+j}, s{sL2E}, -v{mx}")
        A(f"v_fma_f32 v{em+j}, -v{p+j}, s{sL2E}, v{mn}")
    for j in range(16):
        A(f"v_exp_f32 v{ep+j}, v{ep+j}")
        A(f"v_exp_f32 v{em+j}, v{em+j}")
    A(f"s_mov_b64 exec, s[{sHI}:{sHI+1}]")
    for j in range(12, 16):
        A(f"v_mov_b32 v{ep+j}, 0")
        A(f"v_mov_b32 v{em+j}, 0")
    A("s_mov_b64 exec, -1")
    sp, sm = t+4, t+6
    A(f"v_pk_add_f32 {vr(sp,2)}, {vr(ep,2)}, {vr(ep+2,2)}")
    A(f"v_pk_add_f32 {vr(sm,2)}, {vr(em,2)}, {vr(em+2,2)}")
    for j in range(4, 16, 2):
        A(f"v_pk_add_f32 {vr(sp,2)}, {vr(sp,2)}, {vr(ep+j,2)}")
        A(f"v_pk_add_f32 {vr(sm,2)}, {vr(sm,2)}, {vr(em+j,2)}")
    A(f"""
    v_add_f32 v{sp}, v{sp}, v{sp+1}
    v_add_f32 v{sm}, v{sm}, v{sm+1}
    v_mov_b32 v{a}, v{sp}
    v_mov_b32 v{b}, v{sm}
    s_nop 0
    v_permlane32_swap_b32 v{a}, v{sp}
    v_permlane32_swap_b32 v{b}, v{sm}
    v_add_f32 v{sp}, v{sp}, v{a}
    v_add_f32 v{sm}, v{sm}, v{b}
    v_rcp_f32 v{sp}, v{sp}
    v_rcp_f32 v{sm}, v{sm}
    s_nop 0
    v_mov_b32 v{sp+1}, v{sp}
    v_mov_b32 v{sm+1}, v{sm}
    """)
    for j in range(0, 16, 2):
        A(f"v_pk_mul_f32 {vr(ep+j,2)}, {vr(ep+j,2)}, {vr(sp,2)}")
        A(f"v_pk_mul_f32 {vr(em+j,2)}, {vr(em+j,2)}, {vr(sm,2)}")
    for j in range(8):
        A(f"v_cvt_pk_bf16_f32 v{out+j}, v{ep+2*j}, v{ep+2*j+1}")
        A(f"v_cvt_pk_bf16_f32 v{out+8+j}, v{em+2*j}, v{em+2*j+1}")

K2A_LDS = 4*4096 + 4*8192

def emit_k2a(A, name="hedge_kernel"):
    sWS = 24
    sH, sRB, sWV, sT0, sT1, sSRC, sL2E = 28, 29, 30, 31, 32, 33, 34
    sHI = 36
    vL, vHI, vT0, vT1, vT2, vLIN = 1, 2, 3, 4, 5, 6
    vWA, vRA = 8, 12
    vT = 16
    vQ, vK, vV, vWP = 24, 32, 40, 48
    vPQ, vPK, vEP, vEM = 64, 80, 96, 112
    vPH = 128
    vPF = 144
    vKV = 160
    vR = 192
    kernel_head(A, name)
    A(f"""
    s_cmp_ge_u32 s2, 256
    s_cbranch_scc1 L2a_end
    s_load_dwordx2 s[20:21], s[0:1], 80
    v_and_b32 v{vL}, 63, v0
    v_lshrrev_b32 v{vT0}, 6, v0
    v_lshrrev_b32 v{vHI}, 5, v{vL}
    v_readfirstlane_b32 s{sWV}, v{vT0}
    s_and_b32 s{sT0}, s2, 7
    s_lshr_b32 s{sT1}, s2, 3
    s_and_b32 s{sRB}, s{sT1}, 15
    s_lshr_b32 s{sT1}, s{sT1}, 4
    s_lshl_b32 s{sH}, s{sT0}, 1
    s_add_u32 s{sH}, s{sH}, s{sT1}
    s_lshl_b32 s{sT0}, s{sH}, 4
    s_add_u32 s{sT0}, s{sT0}, s{sRB}
    s_lshl_b32 s{sT0}, s{sT0}, 2
    s_add_u32 s{sT0}, s{sT0}, s{sWV}
    s_mul_i32 s{sSRC}, s{sT0}, {T_BLK}
    s_mov_b32 s{sL2E}, {fbits(LOG2E):#x}
    s_mov_b32 s{sHI}, 0
    s_mov_b32 s{sHI+1}, -1
    v_lshlrev_b32 v{vLIN}, 4, v{vL}
    s_waitcnt lgkmcnt(0)
    """)
    srd(A, sWS, 20, WS_END)
    A(f"""
    s_lshl_b32 s{sT1}, s{sH}, 11
    s_add_u32 s{sT1}, s{sT1}, {WS_WPF}
    buffer_load_dwordx4 {vr(vWP,4)}, v{vLIN}, s[{sWS}:{sWS+3}], s{sT1} offen
    buffer_load_dwordx4 {vr(vWP+4,4)}, v{vLIN}, s[{sWS}:{sWS+3}], s{sT1} offen offset:1024
    buffer_load_dwordx4 {vr(vK,4)}, v{vLIN}, s[{sWS}:{sWS+3}], s{sSRC} offen offset:2048
    buffer_load_dwordx4 {vr(vK+4,4)}, v{vLIN}, s[{sWS}:{sWS+3}], s{sSRC} offen offset:3072
    buffer_load_dwordx4 {vr(vQ,4)}, v{vLIN}, s[{sWS}:{sWS+3}], s{sSRC} offen
    buffer_load_dwordx4 {vr(vQ+4,4)}, v{vLIN}, s[{sWS}:{sWS+3}], s{sSRC} offen offset:1024
    s_add_u32 s{sT1}, s{sSRC}, 4096
    buffer_load_dwordx4 {vr(vV,4)}, v{vLIN}, s[{sWS}:{sWS+3}], s{sT1} offen
    buffer_load_dwordx4 {vr(vV+4,4)}, v{vLIN}, s[{sWS}:{sWS+3}], s{sT1} offen offset:1024
    """)
    A(f"""
    v_and_b32 v{vT0}, 0x13, v{vL}
    v_bfe_u32 v{vT1}, v{vL}, 2, 1
    v_lshl_or_b32 v{vT0}, v{vT1}, 3, v{vT0}
    v_bfe_u32 v{vT1}, v{vL}, 3, 1
    v_lshl_or_b32 v{vT0}, v{vT1}, 2, v{vT0}
    v_bfe_u32 v{vT1}, v{vT0}, 2, 2
    v_and_b32 v{vT2}, 1, v{vT0}
    v_lshl_or_b32 v{vT1}, v{vT1}, 1, v{vT2}
    v_xor_b32 v{vT1}, v{vT1}, v{vHI}
    v_lshlrev_b32 v{vT1}, 3, v{vT1}
    v_bfe_u32 v{vT2}, v{vT0}, 1, 1
    v_lshl_or_b32 v{vT1}, v{vT2}, 6, v{vT1}
    v_lshl_or_b32 v{vT1}, v{vT0}, 7, v{vT1}
    s_lshl_b32 s{sT1}, s{sWV}, 12
    v_add_u32 v{vWA}, s{sT1}, v{vT1}
    """)
    A(f"""
    v_bfe_u32 v{vT0}, v{vL}, 2, 2
    v_lshl_or_b32 v{vT1}, v{vHI}, 2, v{vT0}
    v_lshlrev_b32 v{vT1}, 7, v{vT1}
    v_bfe_u32 v{vT2}, v{vT0}, 1, 1
    v_lshl_or_b32 v{vT1}, v{vT2}, 6, v{vT1}
    v_and_b32 v{vT0}, 1, v{vT0}
    v_lshl_or_b32 v{vT0}, v{vHI}, 1, v{vT0}
    v_bfe_u32 v{vT2}, v{vL}, 4, 1
    v_lshlrev_b32 v{vT2}, 2, v{vT2}
    v_and_or_b32 v{vT2}, v{vL}, 3, v{vT2}
    v_xor_b32 v{vT0}, v{vT0}, v{vT2}
    v_lshl_or_b32 v{vT1}, v{vT0}, 3, v{vT1}
    v_add_u32 v{vRA}, s{sT1}, v{vT1}
    v_xor_b32 v{vRA+1}, 32, v{vRA}
    v_xor_b32 v{vRA+2}, 64, v{vRA}
    v_xor_b32 v{vRA+3}, 96, v{vRA}
    s_waitcnt vmcnt(4)
    v_mfma_f32_32x32x16_bf16 {vr(vPK,16)}, {vr(vWP,4)}, {vr(vK,4)}, 0
    v_mfma_f32_32x32x16_bf16 {vr(vPK,16)}, {vr(vWP+4,4)}, {vr(vK+4,4)}, {vr(vPK,16)}
    s_waitcnt vmcnt(2)
    v_mfma_f32_32x32x16_bf16 {vr(vPQ,16)}, {vr(vWP,4)}, {vr(vQ,4)}, 0
    v_mfma_f32_32x32x16_bf16 {vr(vPQ,16)}, {vr(vWP+4,4)}, {vr(vQ+4,4)}, {vr(vPQ,16)}
    s_nop 9
    """)
    softmax_pm(A, vPK, vEP, vEM, vT, sHI, sL2E, vPH)
    for sg in range(2):
        for a in range(4):
            x = (a << 4) ^ (sg << 6)
            if x: A(f"v_xor_b32 v{vT0}, {x}, v{vWA}")
            A(f"ds_write_b64 v{vT0 if x else vWA}, {vr(vPH+8*sg+2*a,2)}")
    A("s_waitcnt lgkmcnt(0)")
    for sg in range(2):
        for s_ in range(2):
            for u in range(2):
                A(f"ds_read_b64_tr_b16 {vr(vPF+8*sg+4*s_+2*u,2)}, v{vRA+2*sg+u} offset:{s_*2048+u*1024}")
    A("s_waitcnt vmcnt(0) lgkmcnt(0)")
    for sg in range(2):
        A(f"v_mfma_f32_32x32x16_bf16 {vr(vKV+16*sg,16)}, {vr(vPF+8*sg,4)}, {vr(vV,4)}, 0")
        A(f"v_mfma_f32_32x32x16_bf16 {vr(vKV+16*sg,16)}, {vr(vPF+8*sg+4,4)}, {vr(vV+4,4)}, {vr(vKV+16*sg,16)}")
    softmax_pm(A, vPQ, vEP, vEM, vT, sHI, sL2E, vPH)
    A(f"""
    s_lshl_b32 s{sT1}, s{sT0}, 12
    s_add_u32 s{sT1}, s{sT1}, {WS_PHQ}
    """)
    for j in range(4):
        A(f"buffer_store_dwordx4 {vr(vPH+4*j,4)}, v{vLIN}, s[{sWS}:{sWS+3}], s{sT1} offen offset:{j*1024}")
    A(f"""
    s_lshl_b32 s{sT1}, s{sWV}, 13
    s_add_u32 s{sT1}, s{sT1}, 16384
    v_add_u32 v{vT0}, s{sT1}, v{vLIN}
    """)
    for j in range(8):
        A(f"ds_write_b128 v{vT0}, {vr(vKV+4*j,4)} offset:{j*1024}")
    A(f"""
    s_lshl_b32 s{sT1}, s{sWV}, 11
    s_add_u32 s{sT1}, s{sT1}, 16384
    v_add_u32 v{vT0}, s{sT1}, v{vLIN}
    s_waitcnt lgkmcnt(0)
    s_barrier
    """)
    for w in range(4):
        for c in range(2):
            A(f"ds_read_b128 {vr(vR+8*w+4*c,4)}, v{vT0} offset:{w*8192+c*1024}")
    A(f"""
    s_lshl_b32 s{sT0}, s{sH}, 4
    s_add_u32 s{sT0}, s{sT0}, s{sRB}
    s_lshl_b32 s{sT0}, s{sT0}, 2
    s_add_u32 s{sT0}, s{sT0}, s{sWV}
    s_lshl_b32 s{sT0}, s{sT0}, 11
    s_add_u32 s{sT0}, s{sT0}, {WS_KVP}
    s_waitcnt lgkmcnt(0)
    """)
    for j in range(0, 8, 2):
        A(f"v_pk_add_f32 {vr(vR+j,2)}, {vr(vR+j,2)}, {vr(vR+8+j,2)}")
        A(f"v_pk_add_f32 {vr(vR+16+j,2)}, {vr(vR+16+j,2)}, {vr(vR+24+j,2)}")
    for j in range(0, 8, 2):
        A(f"v_pk_add_f32 {vr(vR+j,2)}, {vr(vR+j,2)}, {vr(vR+16+j,2)}")
    A(f"""
    buffer_store_dwordx4 {vr(vR,4)}, v{vLIN}, s[{sWS}:{sWS+3}], s{sT0} offen
    buffer_store_dwordx4 {vr(vR+4,4)}, v{vLIN}, s[{sWS}:{sWS+3}], s{sT0} offen offset:1024
    L2a_end:
    s_endpgm
    """)
    return dict(name=name, grid=256, block=256, lds=K2A_LDS, nvgpr=224, accum=224)
```

```python
from asmlib import *
from layout import *

K2B_LDS = 4*1024 + 4096 + 4*12288
L_M, L_KV, L_C = 0, 4096, 8192

def split3(A, m, t, o0, o1):
    A(f"""
    v_xor_b32 v{m}, 0x80000000, v{m}
    v_and_b32 v{t}, 0xffff0000, v{m}
    v_sub_f32 v{m}, v{m}, v{t}
    v_and_b32 v{t+1}, 0xffff0000, v{m}
    v_sub_f32 v{m}, v{m}, v{t+1}
    v_lshrrev_b32 v{t}, 16, v{t}
    v_or_b32 v{o0}, v{t}, v{t+1}
    v_lshrrev_b32 v{o1}, 16, v{m}
    """)

def max16(A, s, m, t):
    A(f"v_max3_f32 v{m}, v{s}, v{s+1}, v{s+2}")
    for j in range(3, 15, 2):
        A(f"v_max3_f32 v{m}, v{m}, v{s+j}, v{s+j+1}")
    A(f"v_max_f32 v{m}, v{m}, v{s+15}")

def emit_k2b(A, name="attn_kernel"):
    sWS, sKV = 24, 28
    sH, sRB, sWV, sT0, sT1, sKO, sIT, sTILE = 32, 33, 34, 35, 36, 37, 38, 39
    sHI = 40
    sFB, sPO = 42, 43
    vL, vHI, vT0, vT1, vT2, vLIN, vIDX, vG = 1, 2, 3, 4, 5, 6, 7, 8
    vT = 10
    vS = 16
    vQ = 80
    vPH = 112
    vKP = 128
    aO = 0
    aKV = 64
    kernel_head(A, name)
    A(f"""
    s_cmp_ge_u32 s2, 256
    s_cbranch_scc1 L2_end
    s_load_dwordx2 s[20:21], s[0:1], 80
    v_and_b32 v{vL}, 63, v0
    v_lshrrev_b32 v{vT0}, 6, v0
    v_lshrrev_b32 v{vHI}, 5, v{vL}
    v_readfirstlane_b32 s{sWV}, v{vT0}
    s_and_b32 s{sT0}, s2, 7
    s_lshr_b32 s{sT1}, s2, 3
    s_and_b32 s{sRB}, s{sT1}, 15
    s_lshr_b32 s{sT1}, s{sT1}, 4
    s_lshl_b32 s{sH}, s{sT0}, 1
    s_add_u32 s{sH}, s{sH}, s{sT1}
    s_mov_b32 s{sHI}, 0
    s_mov_b32 s{sHI+1}, -1
    v_lshlrev_b32 v{vLIN}, 4, v{vL}
    v_mov_b32 v{vIDX}, 0xdddddddd
    s_lshl_b32 s{sT0}, s{sH}, 2
    s_add_u32 s{sT0}, s{sT0}, s{sWV}
    s_mul_i32 s{sKO}, s{sT0}, {16*T_BLK}
    s_add_u32 s{sKO}, s{sKO}, {4*2048}
    s_lshl_b32 s{sT0}, s{sH}, 4
    s_add_u32 s{sT0}, s{sT0}, s{sRB}
    s_lshl_b32 s{sTILE}, s{sT0}, 2
    s_mul_i32 s{sT0}, s{sTILE}, {T_BLK}
    s_add_u32 s{sT0}, s{sT0}, {3*2048}
    s_add_u32 s{sTILE}, s{sTILE}, s{sWV}
    s_waitcnt lgkmcnt(0)
    """)
    srd(A, sWS, 20, WS_END)
    srd(A, sKV, 20, WS_END)
    def ldK(b):
        for j in range(2): A(f"buffer_load_dwordx4 {ar(aKV+16*b+4*j,4)}, v{vLIN}, s[{sKV}:{sKV+3}], s{sKO} offen offset:{j*1024}")
    def ldV(b):
        for j in range(2, 4): A(f"buffer_load_dwordx4 {ar(aKV+16*b+4*j,4)}, v{vLIN}, s[{sKV}:{sKV+3}], s{sKO} offen offset:{j*1024}")
        A(f"s_add_u32 s{sKO}, s{sKO}, {T_BLK}")
    ldK(0)
    for i in range(4):
        A(f"buffer_load_dwordx4 {vr(vQ+8*i,4)}, v{vLIN}, s[{sWS}:{sWS+3}], s{sT0} offen")
        A(f"buffer_load_dwordx4 {vr(vQ+8*i+4,4)}, v{vLIN}, s[{sWS}:{sWS+3}], s{sT0} offen offset:1024")
        if i < 3: A(f"s_add_u32 s{sT0}, s{sT0}, {T_BLK}")
    ldV(0)
    for b in range(1, 4): ldK(b); ldV(b)
    A(f"s_lshl_b32 s{sT0}, s{sTILE}, 12\ns_add_u32 s{sT0}, s{sT0}, {WS_PHQ}")
    for j in range(4):
        A(f"buffer_load_dwordx4 {vr(vPH+4*j,4)}, v{vLIN}, s[{sWS}:{sWS+3}], s{sT0} offen offset:{j*1024}")
    A(f"""
    v_and_b32 v{vT0}, 0x13, v{vL}
    v_bfe_u32 v{vT1}, v{vL}, 2, 1
    v_lshl_or_b32 v{vT0}, v{vT1}, 3, v{vT0}
    v_bfe_u32 v{vT1}, v{vL}, 3, 1
    v_lshl_or_b32 v{vT0}, v{vT1}, 2, v{vT0}
    v_lshlrev_b32 v{vT0}, 2, v{vT0}
    s_and_b32 s{sT0}, s{sTILE}, 63
    s_lshl_b32 s{sT0}, s{sT0}, 7
    s_add_u32 s{sT0}, s{sT0}, {WS_G}
    buffer_load_dword v{vG}, v{vT0}, s[{sWS}:{sWS+3}], s{sT0} offen
    s_lshl_b32 s{sT0}, s{sH}, 6
    s_add_u32 s{sT0}, s{sT0}, s{sWV}
    s_lshl_b32 s{sT0}, s{sT0}, 11
    s_add_u32 s{sT0}, s{sT0}, {WS_KVP}
    """)
    NX = 5
    A(f"s_mov_b32 s{sPO}, s{sT0}")
    for i in range(40): A(f"v_mov_b32 v{vKP+i}, 0")
    ev = ["K0"]*2 + ["Q"]*8 + ["V0"]*2
    for b_ in range(1, 4): ev += [f"K{b_}"]*2 + [f"V{b_}"]*2
    ev += ["X"]*NX
    need = {}
    def younger(tag):
        last = max(i for i, e in enumerate(ev) if e == tag)
        return len(ev) - 1 - last
    for it in range(4):
        T = 4*it
        for n in range(16):
            if (n + 2) % 4 == 0: need.setdefault(("K", n), []).append(younger(f"K{T + (n+2)//4}"))
            if n % 4 == 2: ev += [f"K{T + (n >> 2) + 4}"]*2
            if n % 4 == 1 and n >= 5: ev += [f"V{T + ((n-5) >> 2) + 4}"]*2
            if n == 1 and it > 0: ev += [f"V{T + 3}"]*2
            if n % 4 == 3:
                if it > 0: need.setdefault(("P", n), []).append(younger(f"P{T + (n >> 2) - 4}"))
                ev += [f"P{T + (n >> 2)}"]*2
            if n % 4 == 0: need.setdefault(("V", n), []).append(younger(f"V{T + n//4}"))
    WN = {k: min(v) for k, v in need.items()}
    for (k, n), v in need.items():
        if k == "P":
            assert min(v) >= WN[("K", n-1)] + 2, (k, n, v)
    for i in range(64): A(f"v_accvgpr_write_b32 a{aO+i}, 0")
    A(f"s_waitcnt vmcnt({NX+14})")
    for w in range(4):
        A(f"s_cmp_lg_u32 s{sWV}, {w}\ns_cbranch_scc1 L2_m{w}")
        A(f"v_mfma_f32_32x32x16_bf16 {vr(vS,16)}, {ar(aKV,4)}, {vr(vQ+8*w,4)}, 0")
        A(f"v_mfma_f32_32x32x16_bf16 {vr(vS,16)}, {ar(aKV+4,4)}, {vr(vQ+8*w+4,4)}, {vr(vS,16)}")
        A(f"L2_m{w}:")
    A(f"""
    s_lshl_b32 s{sT0}, s{sWV}, 9
    v_lshlrev_b32 v{vT2}, 3, v{vL}
    v_add_u32 v{vT1}, s{sT0}, v{vT2}
    s_nop 9
    """)
    max16(A, vS, vT0, None)
    A(f"""
    v_mov_b32 v{vT}, v{vT0}
    s_nop 1
    v_permlane32_swap_b32 v{vT}, v{vT0}
    v_max_f32 v{vT0}, v{vT0}, v{vT}
    """)
    split3(A, vT0, vT, vT+2, vT+3)
    A(f"""
    ds_write_b64 v{vT1}, {vr(vT+2,2)} offset:{L_M}
    s_waitcnt lgkmcnt(0)
    s_barrier
    s_mov_b64 exec, s[{sHI}:{sHI+1}]
    """)
    for i in range(4):
        A(f"ds_read_b64 {vr(vQ+8*i+6,2)}, v{vT2} offset:{L_M+i*512}")
    A("s_mov_b64 exec, -1\ns_waitcnt lgkmcnt(0)")
    def QK(n, j):
        i, b = n & 3, (n >> 2) & 3
        c = "0" if j == 0 else vr(vS+16*i, 16)
        A(f"v_mfma_f32_32x32x16_bf16 {vr(vS+16*i,16)}, {ar(aKV+16*b+4*j,4)}, {vr(vQ+8*i+4*j,4)}, {c}")
    def PV(n, j):
        i, b = n & 3, (n >> 2) & 3
        A(f"v_smfmac_f32_32x32x32_bf16 {ar(aO+16*i,16)}, {ar(aKV+16*b+8+4*j,4)}, {vr(vS+16*i+8*j,8)}, v{vIDX}")
    def EX(n, g):
        i = n & 3
        for e in range(4*g, 4*g+4): A(f"v_exp_f32 v{vS+16*i+e}, v{vS+16*i+e}")
    QK(0, 0); QK(0, 1); QK(1, 0); QK(1, 1)
    A(f"s_mov_b32 s{sIT}, 0\ns_nop 8")
    QK(2, 0); EX(0, 0)
    A("s_branch L2_in")
    A(".p2align 6\nL2_loop:")
    for n in range(16):
        if (n + 2) % 4 == 0: A(f"s_waitcnt vmcnt({WN[('K', n)]})")
        QK(n + 2, 0)
        EX(n, 0)
        PV(n - 1, 1)
        if n == 0: A("L2_in:")
        if n % 4 == 2: ldK(n >> 2)
        if n % 4 == 1 and n >= 5: ldV((n - 5) >> 2)
        if n == 1:
            A(f"s_cmp_eq_u32 s{sIT}, 0\ns_cbranch_scc1 L2_skipv")
            ldV(3)
            A(f"""
            s_cmp_eq_u32 s{sIT}, 3
            s_cselect_b32 s{sKV+2}, 0, s{sKV+2}
            L2_skipv:
            """)
        if n % 4 == 3:
            r = vKP + 8 + 8*(n >> 2)
            for j in range(0, 8, 2): A(f"v_pk_add_f32 {vr(vKP+j,2)}, {vr(vKP+j,2)}, {vr(r+j,2)}")
            A(f"buffer_load_dwordx4 {vr(r,4)}, v{vLIN}, s[{sWS}:{sWS+3}], s{sPO} offen")
            A(f"buffer_load_dwordx4 {vr(r+4,4)}, v{vLIN}, s[{sWS}:{sWS+3}], s{sPO} offen offset:1024")
            A(f"s_add_u32 s{sPO}, s{sPO}, 8192")
        EX(n, 1)
        QK(n + 2, 1)
        EX(n, 2)
        if n % 4 == 0: A(f"s_waitcnt vmcnt({WN[('V', n)]})")
        PV(n, 0)
        EX(n, 3)
    A(f"""
    s_add_u32 s{sIT}, s{sIT}, 1
    s_cmp_lt_u32 s{sIT}, 4
    s_cbranch_scc1 L2_loop
    s_nop 0
    """)
    PV(15, 1)
    A("s_waitcnt vmcnt(0)")
    for r in range(4):
        for j in range(0, 8, 2):
            A(f"v_pk_add_f32 {vr(vKP+j,2)}, {vr(vKP+j,2)}, {vr(vKP+8+8*r+j,2)}")
    for j in range(4): A(f"v_cvt_pk_bf16_f32 v{vKP+j}, v{vKP+2*j}, v{vKP+2*j+1}")
    A(f"""
    s_lshl_b32 s{sT0}, s{sWV}, 10
    v_add_u32 v{vT0}, s{sT0}, v{vLIN}
    ds_write_b128 v{vT0}, {vr(vKP,4)} offset:{L_KV}
    """)
    for i in range(4):
        A(f"""
        s_cmp_eq_u32 s{sWV}, {i}
        s_cbranch_scc1 L2_c{i}
        s_sub_u32 s{sT0}, s{sWV}, {i+1}
        s_and_b32 s{sT0}, s{sT0}, 3
        s_lshl_b32 s{sT0}, s{sT0}, 12
        s_add_u32 s{sT0}, s{sT0}, {L_C + i*12288}
        v_add_u32 v{vT0}, s{sT0}, v{vLIN}
        """)
        for j in range(4): A(f"ds_write_b128 v{vT0}, {ar(aO+16*i+4*j,4)} offset:{j*1024}")
        A(f"s_branch L2_d{i}\nL2_c{i}:")
        for j in range(16): A(f"v_accvgpr_read_b32 v{vS+j}, a{aO+16*i+j}")
        A(f"L2_d{i}:")
    vR = vS + 16
    vKF = vKP + 16
    vN = vKP + 32
    A(f"""
    s_mul_i32 s{sT0}, s{sWV}, 12288
    v_add_u32 v{vT0}, s{sT0}, v{vLIN}
    s_waitcnt lgkmcnt(0)
    s_barrier
    """)
    for j in range(4): A(f"ds_read_b128 {vr(vKF+4*j,4)}, v{vLIN} offset:{L_KV+j*1024}")
    for j in range(12):
        if j == 8: A("s_waitcnt lgkmcnt(8)")
        A(f"ds_read_b128 {vr(vR+4*j,4)}, v{vT0} offset:{L_C+j*1024}")
    for j in range(4):
        A(f"v_mfma_f32_32x32x16_bf16 {vr(vN,16)}, {vr(vKF+4*j,4)}, {vr(vPH+4*j,4)}, {'0' if j == 0 else vr(vN,16)}")
    A("s_waitcnt lgkmcnt(0)")
    for k in range(3):
        for j in range(0, 16, 2):
            A(f"v_pk_add_f32 {vr(vS+j,2)}, {vr(vS+j,2)}, {vr(vR+16*k+j,2)}")
    A(f"v_mul_f32 v{vT0}, 0, v{vS}")
    for j in range(1, 16): A(f"v_fma_f32 v{vT0}, v{vS+j}, 0, v{vT0}")
    A(f"""
    v_cmp_u_f32 vcc, v{vT0}, v{vT0}
    s_nop 1
    s_cmp_lg_u64 vcc, 0
    s_cbranch_scc1 L2_fallback
    L2_fin:
    """)
    def finish(src, eps, gexpr_one_minus, br):
        A(f"""
        v_mov_b32 v{vT0}, v{src+12}
        v_mov_b32 v{vT1}, v{src+12}
        s_nop 1
        v_permlane32_swap_b32 v{vT0}, v{vT1}
        """)
        if eps: A(f"v_add_f32 v{vT1}, {fbits(1e-6):#x}, v{vT1}")
        A(f"v_rcp_f32 v{vT1}, v{vT1}")
        if gexpr_one_minus: A(f"v_sub_f32 v{vT2}, 1.0, v{vG}")
        else: A(f"v_mov_b32 v{vT2}, v{vG}")
        A(f"v_mul_f32 v{vT}, v{vT1}, v{vT2}\nv_mul_f32 v{vT+1}, v{vT1}, v{vT2}")
        for j in range(0, 16, 2): A(f"v_pk_mul_f32 {vr(src+j,2)}, {vr(src+j,2)}, {vr(vT,2)}")
        for j in range(8): A(f"v_cvt_pk_bf16_f32 v{src+j}, v{src+2*j}, v{src+2*j+1}")
        A(f"""
        s_mov_b64 exec, s[{sHI}:{sHI+1}]
        v_mov_b32 v{src+6}, 0
        v_mov_b32 v{src+7}, 0
        s_mov_b64 exec, -1
        s_and_b32 s{sT0}, s{sTILE}, 63
        s_lshl_b32 s{sT0}, s{sT0}, 5
        s_add_u32 s{sT0}, s{sT0}, s{sH}
        s_lshl_b32 s{sT0}, s{sT0}, 11
        s_add_u32 s{sT0}, s{sT0}, {WS_OF + br*16*2048}
        buffer_store_dwordx4 {vr(src,4)}, v{vLIN}, s[{sWS}:{sWS+3}], s{sT0} offen
        buffer_store_dwordx4 {vr(src+4,4)}, v{vLIN}, s[{sWS}:{sWS+3}], s{sT0} offen offset:1024
        """)
    finish(vS, False, True, 1)
    finish(vN, True, False, 0)
    A("L2_end:\ns_endpgm")
    vFQ, vFK, vFM = vKP + 48, vKP + 56, vKP + 72
    vFS = vS + 16
    A("L2_fallback:")
    A(f"""
    s_mul_i32 s{sT0}, s{sTILE}, {T_BLK}
    s_add_u32 s{sT0}, s{sT0}, {3*2048}
    buffer_load_dwordx4 {vr(vFQ,4)}, v{vLIN}, s[{sWS}:{sWS+3}], s{sT0} offen
    buffer_load_dwordx4 {vr(vFQ+4,4)}, v{vLIN}, s[{sWS}:{sWS+3}], s{sT0} offen offset:1024
    s_mul_i32 s{sFB}, s{sH}, {64*T_BLK}
    s_add_u32 s{sFB}, s{sFB}, {4*2048}
    s_mov_b32 s{sKO}, s{sFB}
    s_mov_b32 s{sIT}, 0
    v_mov_b32 v{vFM}, 0xff800000
    L2_f1:
    buffer_load_dwordx4 {vr(vFK,4)}, v{vLIN}, s[{sWS}:{sWS+3}], s{sKO} offen
    buffer_load_dwordx4 {vr(vFK+4,4)}, v{vLIN}, s[{sWS}:{sWS+3}], s{sKO} offen offset:1024
    s_waitcnt vmcnt(0)
    v_mfma_f32_32x32x16_bf16 {vr(vFS,16)}, {vr(vFK,4)}, {vr(vFQ,4)}, 0
    v_mfma_f32_32x32x16_bf16 {vr(vFS,16)}, {vr(vFK+4,4)}, {vr(vFQ+4,4)}, {vr(vFS,16)}
    s_nop 12
    """)
    max16(A, vFS, vT0, None)
    A(f"""
    v_max_f32 v{vFM}, v{vFM}, v{vT0}
    s_add_u32 s{sKO}, s{sKO}, {T_BLK}
    s_add_u32 s{sIT}, s{sIT}, 1
    s_cmp_lt_u32 s{sIT}, 64
    s_cbranch_scc1 L2_f1
    v_mov_b32 v{vT0}, v{vFM}
    s_nop 1
    v_permlane32_swap_b32 v{vT0}, v{vFM}
    v_max_f32 v{vT0}, v{vT0}, v{vFM}
    """)
    split3(A, vT0, vT, vT+2, vT+3)
    A(f"""
    s_mov_b64 exec, s[{sHI}:{sHI+1}]
    v_mov_b32 v{vFQ+6}, v{vT+2}
    v_mov_b32 v{vFQ+7}, v{vT+3}
    s_mov_b64 exec, -1
    s_mov_b32 s{sKO}, s{sFB}
    s_mov_b32 s{sIT}, 0
    """)
    for j in range(16): A(f"v_mov_b32 v{vS+j}, 0")
    A("L2_f2:")
    for j in range(4): A(f"buffer_load_dwordx4 {vr(vFK+4*j,4)}, v{vLIN}, s[{sWS}:{sWS+3}], s{sKO} offen offset:{j*1024}")
    A(f"""
    s_waitcnt vmcnt(0)
    v_mfma_f32_32x32x16_bf16 {vr(vFS,16)}, {vr(vFK,4)}, {vr(vFQ,4)}, 0
    v_mfma_f32_32x32x16_bf16 {vr(vFS,16)}, {vr(vFK+4,4)}, {vr(vFQ+4,4)}, {vr(vFS,16)}
    s_nop 12
    """)
    for j in range(16): A(f"v_exp_f32 v{vFS+j}, v{vFS+j}")
    A(f"""
    s_nop 1
    v_smfmac_f32_32x32x32_bf16 {vr(vS,16)}, {vr(vFK+8,4)}, {vr(vFS,8)}, v{vIDX}
    v_smfmac_f32_32x32x32_bf16 {vr(vS,16)}, {vr(vFK+12,4)}, {vr(vFS+8,8)}, v{vIDX}
    s_add_u32 s{sKO}, s{sKO}, {T_BLK}
    s_add_u32 s{sIT}, s{sIT}, 1
    s_cmp_lt_u32 s{sIT}, 64
    s_nop 12
    s_cbranch_scc1 L2_f2
    s_branch L2_fin
    """)
    return dict(name=name, grid=256, block=256, lds=K2B_LDS, nvgpr=208+128, accum=208)
```

```python
from asmlib import *
from layout import *

W_LDS = 232*128
K3_LDS = 4*W_LDS

def emit_k3(A, name="oproj_kernel"):
    sWS, sW, sO = 24, 28, 32
    sRT, sCT, sWV, sT0, sT1, sOO, sWO = 36, 37, 38, 39, 40, 41, 42
    vL, vHI, vT0, vT1, vT2, vLIN, vWO, vWA = 1, 2, 3, 4, 5, 6, 7, 8
    vST = 10
    vWF = 16
    vACC = 32
    vO = 96
    kernel_head(A, name)
    A(f"""
    s_cmp_ge_u32 s2, 224
    s_cbranch_scc1 L3_end
    s_load_dwordx2 s[6:7], s[0:1], 24
    s_load_dwordx2 s[8:9], s[0:1], 48
    s_load_dwordx2 s[10:11], s[0:1], 64
    s_load_dwordx2 s[20:21], s[0:1], 80
    v_and_b32 v{vL}, 63, v0
    v_lshrrev_b32 v{vT0}, 6, v0
    v_lshrrev_b32 v{vHI}, 5, v{vL}
    v_readfirstlane_b32 s{sWV}, v{vT0}
    s_and_b32 s{sT0}, s2, 7
    s_lshr_b32 s{sT1}, s2, 3
    s_mul_i32 s{sRT}, s{sT1}, 37
    s_lshr_b32 s{sRT}, s{sRT}, 8
    s_mul_i32 s{sCT}, s{sRT}, 7
    s_sub_u32 s{sCT}, s{sT1}, s{sCT}
    s_lshl_b32 s{sT0}, s{sT0}, 2
    s_add_u32 s{sRT}, s{sRT}, s{sT0}
    v_lshlrev_b32 v{vLIN}, 4, v{vL}
    s_lshl_b32 s{sOO}, s{sRT}, 17
    s_lshl_b32 s{sT0}, s{sWV}, 14
    s_add_u32 s{sOO}, s{sOO}, s{sT0}
    s_add_u32 s{sOO}, s{sOO}, {WS_OF}
    s_and_b32 s{sT0}, s{sWV}, 1
    s_mul_i32 s{sWO}, s{sT0}, {224*896}
    s_lshl_b32 s{sT0}, s{sCT}, 7
    s_add_u32 s{sWO}, s{sWO}, s{sT0}
    v_lshrrev_b32 v{vT0}, 3, v{vL}
    v_mul_u32_u24 v{vWO}, 896, v{vT0}
    v_bfe_u32 v{vT0}, v{vL}, 4, 1
    v_lshlrev_b32 v{vT0}, 2, v{vT0}
    v_and_b32 v{vT1}, 7, v{vL}
    v_xor_b32 v{vT0}, v{vT0}, v{vT1}
    v_lshl_add_u32 v{vWO}, v{vT0}, 4, v{vWO}
    s_mul_i32 s{sT1}, s{sWV}, {W_LDS}
    s_mov_b32 m0, s{sT1}
    s_waitcnt lgkmcnt(0)
    """)
    srd(A, sWS, 20, WS_END)
    A(f"""
    s_cmp_lt_u32 s{sWV}, 2
    s_cselect_b32 s{sW}, s6, s8
    s_cselect_b32 s{sW+1}, s7, s9
    s_mov_b32 s{sW+2}, {D*D*2:#x}
    s_mov_b32 s{sW+3}, 0x00020000
    """)
    srd(A, sO, 10, S*D*2)
    ev = []
    nw = 0
    for hl in range(8):
        upto = -(-(28*hl + 32) // 8)
        while nw < upto:
            A(f"buffer_load_dwordx4 v{vWO}, s[{sW}:{sW+3}], s{sWO} offen lds")
            A(f"s_add_u32 m0, m0, 1024\ns_add_u32 s{sWO}, s{sWO}, {8*896}")
            nw += 1; ev.append("W")
        for rt in range(2):
            A(f"s_add_u32 s{sT0}, s{sOO}, {rt*65536 + hl*2048}")
            for s_ in range(2):
                A(f"buffer_load_dwordx4 {vr(vO + ((hl*2+s_)*2+rt)*4, 4)}, v{vLIN}, s[{sWS}:{sWS+3}], s{sT0} offen offset:{s_*1024}")
                ev.append(f"O{hl}")
    assert nw == 29 and len(ev) <= 63
    A(f"""
    v_bfe_u32 v{vT0}, v{vL}, 2, 2
    v_lshl_or_b32 v{vT1}, v{vHI}, 2, v{vT0}
    v_lshlrev_b32 v{vT1}, 7, v{vT1}
    v_bfe_u32 v{vT0}, v{vL}, 3, 1
    v_lshl_or_b32 v{vT1}, v{vT0}, 6, v{vT1}
    v_bfe_u32 v{vT0}, v{vL}, 4, 1
    v_lshl_or_b32 v{vT1}, v{vT0}, 5, v{vT1}
    v_and_b32 v{vT0}, 3, v{vL}
    v_lshl_or_b32 v{vT1}, v{vT0}, 3, v{vT1}
    v_add_u32 v{vWA}, s{sT1}, v{vT1}
    v_xor_b32 v{vWA+1}, 64, v{vWA}
    """)
    for i in range(64): A(f"v_mov_b32 v{vACC+i}, 0")
    def rd(k, buf):
        hl, s_ = k >> 1, k & 1
        if s_ == 0:
            last = max(i for i, e in enumerate(ev) if e == f"O{hl}")
            A(f"s_waitcnt vmcnt({len(ev)-1-last})")
        for ct in range(2):
            for u in range(2):
                A(f"ds_read_b64_tr_b16 {vr(vWF+8*buf+4*ct+2*u,2)}, v{vWA+ct} offset:{(28*hl+16*s_+8*u)*128}")
    rd(0, 0)
    for k in range(16):
        buf = k & 1
        if k < 15:
            rd(k+1, buf ^ 1)
            A("s_waitcnt lgkmcnt(4)")
        else:
            A("s_waitcnt lgkmcnt(0)")
        for rt in range(2):
            for ct in range(2):
                acc = vr(vACC + 16*(rt*2+ct), 16)
                A(f"v_mfma_f32_32x32x16_bf16 {acc}, {vr(vWF+8*buf+4*ct,4)}, {vr(vO+(k*2+rt)*4,4)}, {acc}")
    A("s_barrier\ns_nop 7")
    vF = vO
    vR = vO + 16
    for i in range(4):
        A(f"""
        s_cmp_eq_u32 s{sWV}, {i}
        s_cbranch_scc1 L3_c{i}
        s_sub_u32 s{sT0}, s{sWV}, {i+1}
        s_and_b32 s{sT0}, s{sT0}, 3
        s_lshl_b32 s{sT0}, s{sT0}, 12
        s_add_u32 s{sT0}, s{sT0}, {i*12288}
        v_add_u32 v{vT0}, s{sT0}, v{vLIN}
        """)
        for j in range(4): A(f"ds_write_b128 v{vT0}, {vr(vACC+16*i+4*j,4)} offset:{j*1024}")
        A(f"s_branch L3_d{i}\nL3_c{i}:")
        for j in range(16): A(f"v_mov_b32 v{vF+j}, v{vACC+16*i+j}")
        A(f"L3_d{i}:")
    A(f"""
    s_mul_i32 s{sT0}, s{sWV}, 12288
    v_add_u32 v{vT0}, s{sT0}, v{vLIN}
    s_waitcnt lgkmcnt(0)
    s_barrier
    """)
    for j in range(12): A(f"ds_read_b128 {vr(vR+4*j,4)}, v{vT0} offset:{j*1024}")
    A(f"""
    v_and_b32 v{vT0}, 0x13, v{vL}
    v_bfe_u32 v{vT1}, v{vL}, 2, 1
    v_lshl_or_b32 v{vT0}, v{vT1}, 3, v{vT0}
    v_bfe_u32 v{vT1}, v{vL}, 3, 1
    v_lshl_or_b32 v{vT0}, v{vT1}, 2, v{vT0}
    v_mul_u32_u24 v{vST}, 896, v{vT0}
    v_lshl_add_u32 v{vST}, v{vHI}, 4, v{vST}
    s_lshl_b32 s{sT0}, s{sRT}, 1
    s_lshr_b32 s{sT1}, s{sWV}, 1
    s_add_u32 s{sT0}, s{sT0}, s{sT1}
    s_mul_i32 s{sT0}, s{sT0}, {32*896}
    s_lshl_b32 s{sT1}, s{sCT}, 7
    s_add_u32 s{sT0}, s{sT0}, s{sT1}
    s_and_b32 s{sT1}, s{sWV}, 1
    s_lshl_b32 s{sT1}, s{sT1}, 6
    s_add_u32 s{sT0}, s{sT0}, s{sT1}
    s_waitcnt lgkmcnt(0)
    """)
    for k in range(3):
        for j in range(0, 16, 2):
            A(f"v_pk_add_f32 {vr(vF+j,2)}, {vr(vF+j,2)}, {vr(vR+16*k+j,2)}")
    for j in range(8): A(f"v_cvt_pk_bf16_f32 v{vF+j}, v{vF+2*j}, v{vF+2*j+1}")
    A(f"""
    s_nop 1
    v_permlane32_swap_b32 v{vF}, v{vF+2}
    v_permlane32_swap_b32 v{vF+1}, v{vF+3}
    v_permlane32_swap_b32 v{vF+4}, v{vF+6}
    v_permlane32_swap_b32 v{vF+5}, v{vF+7}
    buffer_store_dwordx4 {vr(vF,4)}, v{vST}, s[{sO}:{sO+3}], s{sT0} offen
    buffer_store_dwordx4 {vr(vF+4,4)}, v{vST}, s[{sO}:{sO+3}], s{sT0} offen offset:32
    L3_end:
    s_endpgm
    """)
    return dict(name=name, grid=224, block=256, lds=K3_LDS, nvgpr=224, accum=224)
```

```python
S, D, H, DH = 2048, 448, 16, 28
NT = 64
WS_T   = 0
T_BLK  = 6*2048
WS_T_SZ = H*NT*T_BLK
WS_G   = WS_T + WS_T_SZ
WS_WPF = WS_G + 8192
WS_PHQ = WS_WPF + H*2048
WS_KVP = WS_PHQ + H*NT*4096
WS_OF  = WS_KVP + H*16*8192
WS_END = WS_OF + NT*65536
QSCALE = (DH ** -0.5) * 1.4426950408889634
LOG2E = 1.4426950408889634
import struct
def fbits(x): return struct.unpack("<I", struct.pack("<f", x))[0]
def pi(i):
    return (i & ~12) | ((i & 4) << 1) | ((i & 8) >> 1)
```

```python
import sys
from asmlib import *
import k1, k2a, k2b, k3
NAME = "gated_mix__linear_kernel_hedgehog__softmax_full_mha__prompt"
def build(extra=None):
    A = Asm()
    ks = [k1.emit_k1(A), k2a.emit_k2a(A), k2b.emit_k2b(A), k3.emit_k3(A)]
    hdr = "".join(f"; @launch kernel={k['name']} grid=({k['grid']},1,1) block=({k['block']},1,1) lds={k['lds']}\n" for k in ks)
    src = hdr + '.amdgcn_target "amdgcn-amd-amdhsa--gfx950"\n.text\n' + A.text() + '.section .rodata,"a"\n'
    src += "".join(kernel_desc(k['name'], k['nvgpr'], k['accum']) for k in ks)
    return src
if __name__ == "__main__":
    out = sys.argv[1] if len(sys.argv) > 1 else f"cdna_kernels/{NAME}.s"
    open(out, "w").write(build())
    print("wrote", out)
```
